```python
import torch

def _softmax(x, axis=-1):
    return torch.softmax(x, dim=axis)
def _gelu(x):
    return torch.nn.functional.gelu(x, approximate="tanh")
def _silu(x):
    return torch.nn.functional.silu(x)
def _sigmoid(x):
    return torch.sigmoid(x)
def _layernorm(x, axis=-1, eps=1e-5):
    m = x.mean(dim=axis, keepdim=True)
    v = x.var(dim=axis, keepdim=True, unbiased=False)
    return (x - m) / torch.sqrt(v + eps)
def _scatter_add(tgt, idx, src, axis=0):
    return tgt.clone().index_add_(axis, idx, src)
def _segment_sum(src, seg, n):
    out = torch.zeros((n,) + src.shape[1:], dtype=src.dtype)
    return out.index_add_(0, seg, src)
def _pad(x, pw):
    flat = tuple(v for pair in reversed(pw) for v in pair)
    return torch.nn.functional.pad(x, flat)

kernel_name = 'gated_mix__mha_block__glu_gated_reglu__prompt'

def setup_inputs():

    _w = (lambda a: (lambda t: t.to(torch.bfloat16) if t.is_floating_point() else t)(torch.as_tensor(a)))
    def _A_setup():
        B, S, D, H = 1, 2048, 448, 16
        return {
            "x": _w((lambda *s: torch.randn(*s, dtype=torch.bfloat16) * 0.05)(B, S, D)),
            "wqkv": _w((lambda *s: torch.randn(*s, dtype=torch.bfloat16) * 0.8)(D, 3 * D)),
            "wo": _w((lambda *s: torch.randn(*s, dtype=torch.bfloat16) * 0.05)(D, D)),
        }
    _A_in = _A_setup()

    def _B_setup():
        B, S, D, F = 1, 2048, 448, 1792
        return {
            "x": _w((lambda *s: torch.randn(*s, dtype=torch.bfloat16) * 0.05)(B, S, D)),
            "W_gate": _w((lambda *s: torch.randn(*s, dtype=torch.bfloat16) * 1.6)(D, F) * (2.0 / D) ** 0.5),
            "W_up": _w((lambda *s: torch.randn(*s, dtype=torch.bfloat16) * 1.6)(D, F) * (2.0 / D) ** 0.5),
            "W_down": _w((lambda *s: torch.randn(*s, dtype=torch.bfloat16) * 1.6)(F, D) * (1.0 / F) ** 0.5),
        }
    _B_in = _B_setup()

    return {
        "A_x": _A_in["x"],
        "A_wqkv": _A_in["wqkv"],
        "A_wo": _A_in["wo"],
        "B_x": _B_in["x"],
        "B_W_gate": _B_in["W_gate"],
        "B_W_up": _B_in["W_up"],
        "B_W_down": _B_in["W_down"],
        "gate_w": _w((lambda *s: torch.randn(*s, dtype=torch.bfloat16) * 0.05)(448) * 16.0),
    }

def reference(A_x, A_wqkv, A_wo, B_x, B_W_gate, B_W_up, B_W_down, gate_w):
    def _A_ref(x, wqkv, wo):
        B, S, D = x.shape
        H = 16
        Dh = D // H
        qkv = (lambda x, *d: x.permute(*d))((x @ wqkv).reshape(B, S, 3, H, Dh), 2, 0, 3, 1, 4)
        q, k, v = qkv[0], qkv[1], qkv[2]
        scores = torch.einsum("bhqd,bhkd->bhqk", q, k) * (Dh ** -0.5)
        p = _softmax(scores, axis=-1)
        o = torch.einsum("bhqk,bhkd->bhqd", p, v)
        return (lambda x, *d: x.permute(*d))(o, 0, 2, 1, 3).reshape(B, S, D) @ wo

    def _B_ref(x, W_gate, W_up, W_down):
        gate = torch.einsum("bsd,df->bsf", x, W_gate)
        up = torch.einsum("bsd,df->bsf", x, W_up)
        gate = gate * (lambda x, dt: x.to(dt))(gate > 0, gate.dtype)
        h = gate * up
        return torch.einsum("bsf,fd->bsd", h, W_down)

    x = A_x
    g = _sigmoid((x * gate_w).sum(-1, keepdims=True))
    a = _A_ref(x, A_wqkv, A_wo)
    b = _B_ref(x, B_W_gate, B_W_up, B_W_down)
    return g * a + (1 - g) * b
```

```python
import sys
HEAD = """; @launch grid=({grid},1,1) block=({block},1,1) lds={lds}
.amdgcn_target "amdgcn-amd-amdhsa--gfx950"
.text
.globl mb_kernel
.p2align 8
.type mb_kernel,@function
mb_kernel:
    s_load_dwordx2 s[4:5], s[0:1], 0
    s_load_dwordx2 s[6:7], s[0:1], 8
    s_waitcnt lgkmcnt(0)
    s_mov_b32 s8, s4
    s_mov_b32 s9, s5
    s_mov_b32 s10, 0x100000
    s_mov_b32 s11, 0x00020000
    s_mov_b32 s12, s6
    s_mov_b32 s13, s7
    s_mov_b32 s14, 0x40000
    s_mov_b32 s15, 0x00020000
    v_lshrrev_b32 v1, 6, v0
    s_nop 1
    v_readfirstlane_b32 s16, v1
    s_mul_i32 s17, s2, {wpb}
    s_add_u32 s17, s17, s16
    v_lshlrev_b32 v2, 4, v0
"""
TAIL = """
    s_sub_u32 s20, s22, s20
    v_mov_b32 v1, s20
    s_lshl_b32 s17, s17, 2
    v_mov_b32 v2, s17
    v_and_b32 v3, 63, v0
    v_cmp_eq_u32 vcc, 0, v3
    s_and_saveexec_b64 s[24:25], vcc
    buffer_store_dword v1, v2, s[12:15], 0 offen
    s_waitcnt vmcnt(0)
    s_endpgm
.section .rodata,"a"
.p2align 6
.amdhsa_kernel mb_kernel
  .amdhsa_next_free_vgpr {nv}
  .amdhsa_next_free_sgpr 96
  .amdhsa_accum_offset {acc}
  .amdhsa_group_segment_fixed_size 0
  .amdhsa_kernarg_size 16
  .amdhsa_user_sgpr_count 2
  .amdhsa_user_sgpr_kernarg_segment_ptr 1
  .amdhsa_system_sgpr_workgroup_id_x 1
.end_amdhsa_kernel
"""
def gen(name, body, iters, wpb, grid=256, nv=128, lds=0, pre=""):
    s = HEAD.format(grid=grid, block=wpb*64, lds=lds, wpb=wpb)
    for r in range(4, nv, 4):
        s += f"    buffer_load_dwordx4 v[{r}:{r+3}], v2, s[8:11], 0 offen offset:{(r*16)%4096}\n"
    s += "    s_waitcnt vmcnt(0)\n"
    s += pre
    s += "    s_barrier\n"
    s += f"    s_mov_b32 s18, {iters}\n"
    s += "    s_memtime s[20:21]\n    s_waitcnt lgkmcnt(0)\n"
    s += ".p2align 6\nL_loop:\n" + body
    s += "    s_sub_u32 s18, s18, 1\n    s_cmp_lg_u32 s18, 0\n    s_cbranch_scc1 L_loop\n"
    s += "    s_nop 15\n    s_nop 15\n    s_memtime s[22:23]\n    s_waitcnt lgkmcnt(0)\n"
    s += TAIL.format(nv=nv, acc=nv)
    open(name, "w").write(s)

def rep(f, n): return "".join(f(i) for i in range(n))

def attn_tile(Sn, Sc, P, O, K=8, Q=16, V=24, order="il"):
    mf = [f"    v_mfma_f32_32x32x16_bf16 v[{Sn}:{Sn+15}], v[{K}:{K+3}], v[{Q}:{Q+3}], 0\n",
          f"    v_mfma_f32_32x32x16_bf16 v[{Sn}:{Sn+15}], v[{K+4}:{K+7}], v[{Q+4}:{Q+7}], v[{Sn}:{Sn+15}]\n"]
    pv = [f"    v_mfma_f32_32x32x16_bf16 v[{O}:{O+15}], v[{V}:{V+3}], v[{P}:{P+3}], v[{O}:{O+15}]\n",
          f"    v_mfma_f32_32x32x16_bf16 v[{O}:{O+15}], v[{V+4}:{V+7}], v[{P+4}:{P+7}], v[{O}:{O+15}]\n"]
    return mf, pv

if __name__ == "__main__":
    IT = 200
    for wpb in (4, 8, 12, 16):
        nv = 128
        gen(f"exp_w{wpb}.s", rep(lambda i: f"    v_exp_f32 v{32+i}, v{64+i}\n", 32), IT, wpb)
        gen(f"fma_w{wpb}.s", rep(lambda i: f"    v_fma_f32 v{32+i}, v{64+i}, v{96+i-0 if i<32 else 0}, v{32+i}\n", 32), IT, wpb)
        gen(f"cvt_w{wpb}.s", rep(lambda i: f"    v_cvt_pk_bf16_f32 v{32+i}, v{64+i}, v{96+i}\n", 32), IT, wpb)
        gen(f"pkmul_w{wpb}.s", rep(lambda i: f"    v_pk_mul_f32 v[{32+2*i}:{33+2*i}], v[{64+2*i}:{65+2*i}], v[{96+2*(i%8)}:{97+2*(i%8)}]\n", 16), IT, wpb)
        gen(f"mfma_w{wpb}.s", rep(lambda i: f"    v_mfma_f32_32x32x16_bf16 v[{32+16*(i%4)}:{47+16*(i%4)}], v[8:11], v[12:15], v[{32+16*(i%4)}:{47+16*(i%4)}]\n", 16), IT, wpb)
        b = ""
        for i in range(8):
            b += f"    v_exp_f32 v{32+2*i}, v{64+2*i}\n    v_exp_f32 v{33+2*i}, v{65+2*i}\n"
            b += f"    v_cvt_pk_bf16_f32 v{96+i}, v{48+2*i}, v{49+2*i}\n"
        gen(f"expcvt_w{wpb}.s", b, IT, wpb)
        b = ""
        for t in range(2):
            Sn = 32 + 16*t; Sc = 32 + 16*(1-t); Pw = 80 + 8*t; Pr = 80 + 8*(1-t); O = 96 + 16*t
            mf, pv = attn_tile(Sn, Sc, Pr, O)
            ms = [mf[0], mf[1], pv[0], pv[1]]
            for j in range(4):
                b += ms[j]
                for i in range(4*j, 4*j+4):
                    b += f"    v_exp_f32 v{64+i}, v{Sc+i}\n"
                    if i % 2 == 1 and i >= 3:
                        b += f"    v_cvt_pk_bf16_f32 v{Pw+(i-3)//2}, v{64+i-3}, v{64+i-2}\n"
            b += f"    v_cvt_pk_bf16_f32 v{Pw+7}, v{64+14}, v{64+15}\n"
        gen(f"attn_w{wpb}.s", b, IT, wpb)
```

```python
from gen_issue import *
def genbw(name, addr_code, step, ni, dma, wpb=4, wavestep=0, wgstep=0, depth=16, region=1<<21, passes=4, sc=""):
    nv = 128
    s = HEAD.format(grid=256, block=wpb*64, lds=65536 if dma else 0, wpb=wpb)
    s += f"    s_mov_b32 s10, {region+65536}\n"
    s += "    v_and_b32 v5, 63, v0\n"
    s += addr_code
    s += f"    s_mul_i32 s31, s16, {wavestep}\n    s_lshr_b32 s33, s2, 3\n    s_mul_i32 s32, s33, {wgstep}\n    s_add_u32 s31, s31, s32\n"
    s += f"    s_lshl_b32 s34, s16, 14\n"
    s += "    v_mov_b32 v2, 0\n    v_mov_b32 v3, 0\n    s_mov_b32 s19, 0\n"
    s += "L_outer:\n    s_barrier\n    s_memrealtime s[26:27]\n    s_memtime s[20:21]\n    s_waitcnt lgkmcnt(0)\n"
    s += "    s_mov_b32 m0, s19\n    v_writelane_b32 v2, s20, m0\n    v_writelane_b32 v3, s26, m0\n"
    s += f"    s_add_u32 s19, s19, 1\n    s_cmp_eq_u32 s19, {passes}\n    s_cbranch_scc1 L_fin\n"
    s += f"    s_mov_b32 s30, s31\n    s_mov_b32 s18, {ni//depth}\n"
    s += "L_loop:\n"
    for i in range(depth):
        if dma:
            s += f"    s_add_u32 m0, s34, {i*1024}\n"
            s += f"    s_and_b32 s35, s30, {region-1}\n"
            s += f"    buffer_load_dwordx4 v4, s[8:11], s35 offen lds {sc}\n"
        else:
            s += f"    s_and_b32 s35, s30, {region-1}\n"
            s += f"    buffer_load_dwordx4 v[{32+4*i}:{35+4*i}], v4, s[8:11], s35 offen {sc}\n"
        s += f"    s_add_u32 s30, s30, {step}\n"
        if i == depth//2 - 1 or i == depth-1:
            s += f"    s_waitcnt vmcnt({depth//2})\n"
    s += "    s_sub_u32 s18, s18, 1\n    s_cmp_lg_u32 s18, 0\n    s_cbranch_scc1 L_loop\n"
    s += "    s_waitcnt vmcnt(0)\n    s_branch L_outer\nL_fin:\n"
    s += "    v_and_b32 v1, 63, v0\n    s_lshl_b32 s19, s17, 9\n    v_lshlrev_b32 v1, 2, v1\n    v_add_u32 v1, s19, v1\n"
    s += "    s_mov_b32 s14, 0x200000\n"
    s += "    buffer_store_dword v2, v1, s[12:15], 0 offen\n    buffer_store_dword v3, v1, s[12:15], 0 offen offset:256\n    s_waitcnt vmcnt(0)\n    s_endpgm\n"
    s += TAIL.format(nv=nv, acc=nv).split("s_endpgm")[1]
    open(name, "w").write(s)

def segaddr(lanes_per_row, stride, off=0):
    magic = (65536 + lanes_per_row - 1)//lanes_per_row
    return (f"    v_mul_u32_u24 v6, {magic}, v5\n    v_lshrrev_b32 v6, 16, v6\n"
            f"    v_mul_u32_u24 v7, {lanes_per_row}, v6\n    v_sub_u32 v7, v5, v7\n"
            f"    v_mul_u32_u24 v6, {stride}, v6\n    v_lshlrev_b32 v7, 4, v7\n    v_add_u32 v4, v6, v7\n    v_add_u32 v4, {off}, v4\n")
lin = "    v_lshlrev_b32 v4, 4, v5\n"
NI = 128
for dma in (0, 1):
    t = "dma" if dma else "reg"
    genbw(f"bw_lin_{t}.s", lin, 1024, NI, dma, wavestep=NI*1024, wgstep=65536)
    genbw(f"bw_lin8_{t}.s", lin, 1024, NI, dma, wpb=8, wavestep=NI*1024, wgstep=65536) if not dma else None
    genbw(f"bw_seg256_{t}.s", segaddr(16, 3584), 4*3584, NI, dma, wavestep=256, wgstep=1024)
    genbw(f"bw_seg224a_{t}.s", segaddr(14, 3584, 0), 4*3584, NI, dma, wavestep=896, wgstep=0)
    genbw(f"bw_seg224b_{t}.s", segaddr(14, 3584, 224), 4*3584, NI, dma, wavestep=896, wgstep=0)
    genbw(f"bw_seg128_{t}.s", segaddr(8, 896*4), 8*896*4, NI//2, dma, wavestep=128, wgstep=512)
    genbw(f"bw_seg64_{t}.s", segaddr(4, 2688), 16*2688, NI//4, dma, wavestep=128, wgstep=512)
    genbw(f"bw_seg64u_{t}.s", segaddr(4, 2688, 56), 16*2688, NI//4, dma, wavestep=128, wgstep=512)
    xa = "    v_and_b32 v6, 31, v5\n    v_mul_u32_u24 v6, 896, v6\n    v_lshrrev_b32 v7, 5, v5\n    v_lshlrev_b32 v7, 4, v7\n    v_add_u32 v4, v6, v7\n"
    genbw(f"bw_xfrag_{t}.s", xa, 32, 32, dma, wavestep=32*896, wgstep=128*896)
```

```python
from gen_issue import *
IT = 200
for wpb in (4, 8):
    gen(f"e16_w{wpb}.s", rep(lambda i: f"    v_exp_f16 v{32+i}, v{64+i}\n", 32), IT, wpb)
    gen(f"e16s_w{wpb}.s", rep(lambda i: f"    v_exp_f16_sdwa v{32+i}, v{64+i} dst_sel:WORD_1 dst_unused:UNUSED_PRESERVE src0_sel:WORD_1\n", 32), IT, wpb)
    gen(f"pkrtz_w{wpb}.s", rep(lambda i: f"    v_cvt_pkrtz_f16_f32 v{32+i}, v{64+i}, v{96+i}\n", 32), IT, wpb)
    gen(f"ldexp_w{wpb}.s", rep(lambda i: f"    v_ldexp_f32 v{32+i}, v{64+i}, v{96+i}\n", 32), IT, wpb)
    gen(f"pkfma16_w{wpb}.s", rep(lambda i: f"    v_pk_fma_f16 v{32+i}, v{64+i}, v{96+i}, v{32+i}\n", 32), IT, wpb)
```
